```python
import torch

def _softmax(x, axis=-1):
    return torch.softmax(x, dim=axis)
def _gelu(x):
    return torch.nn.functional.gelu(x, approximate="tanh")
def _silu(x):
    return torch.nn.functional.silu(x)
def _sigmoid(x):
    return torch.sigmoid(x)
def _layernorm(x, axis=-1, eps=1e-5):
    m = x.mean(dim=axis, keepdim=True)
    v = x.var(dim=axis, keepdim=True, unbiased=False)
    return (x - m) / torch.sqrt(v + eps)
def _scatter_add(tgt, idx, src, axis=0):
    return tgt.clone().index_add_(axis, idx, src)
def _segment_sum(src, seg, n):
    out = torch.zeros((n,) + src.shape[1:], dtype=src.dtype)
    return out.index_add_(0, seg, src)
def _pad(x, pw):
    flat = tuple(v for pair in reversed(pw) for v in pair)
    return torch.nn.functional.pad(x, flat)

kernel_name = 'concat_heads__mha_block_cached__gqa_block_cached__near_ridge'

def setup_inputs():

    _w = (lambda a: (lambda t: t.to(torch.bfloat16) if t.is_floating_point() else t)(torch.as_tensor(a)))
    def _A_setup():
        B, Sq, D = 8, 144, 512
        H, Sk, Dh = 32, 512, 128
        return {
            "x": _w((lambda *s: torch.randn(*s, dtype=torch.bfloat16) * 0.8)(B, Sq, D)),
            "k_cache": _w((lambda *s: torch.randn(*s, dtype=torch.bfloat16) * 0.8)(B, H, Sk, Dh)),
            "v_cache": _w((lambda *s: torch.randn(*s, dtype=torch.bfloat16) * 0.05)(B, H, Sk, Dh)),
            "wq": _w((lambda *s: torch.randn(*s, dtype=torch.bfloat16) * 0.8)(D, H * Dh) * (D ** -0.5)),
            "wo": _w((lambda *s: torch.randn(*s, dtype=torch.bfloat16) * 0.05)(H * Dh, D) * ((H * Dh) ** -0.5)),
        }
    _A_in = _A_setup()

    def _B_setup():
        B, Sq, D = 8, 144, 512
        Hq, Hkv, Sk, Dh = 32, 32, 512, 128
        assert Hq % Hkv == 0, (Hq, Hkv)
        return {
            "x": _w((lambda *s: torch.randn(*s, dtype=torch.bfloat16) * 0.8)(B, Sq, D)),
            "k_cache": _w((lambda *s: torch.randn(*s, dtype=torch.bfloat16) * 0.8)(B, Hkv, Sk, Dh)),
            "v_cache": _w((lambda *s: torch.randn(*s, dtype=torch.bfloat16) * 0.05)(B, Hkv, Sk, Dh)),
            "wq": _w((lambda *s: torch.randn(*s, dtype=torch.bfloat16) * 0.8)(D, Hq * Dh) * (D ** -0.5)),
            "wo": _w((lambda *s: torch.randn(*s, dtype=torch.bfloat16) * 0.05)(Hq * Dh, D) * ((Hq * Dh) ** -0.5)),
        }
    _B_in = _B_setup()

    return {
        "A_x": _A_in["x"],
        "A_k_cache": _A_in["k_cache"],
        "A_v_cache": _A_in["v_cache"],
        "A_wq": _A_in["wq"],
        "A_wo": _A_in["wo"],
        "B_x": _B_in["x"],
        "B_k_cache": _B_in["k_cache"],
        "B_v_cache": _B_in["v_cache"],
        "B_wq": _B_in["wq"],
        "B_wo": _B_in["wo"],
    }

def reference(A_x, A_k_cache, A_v_cache, A_wq, A_wo, B_x, B_k_cache, B_v_cache, B_wq, B_wo):
    def _A_ref(x, k_cache, v_cache, wq, wo):
        B, Sq, D = x.shape
        H, Dh = 32, 128
        q = (lambda x, *d: x.permute(*d))((x @ wq).reshape(B, Sq, H, Dh), 0, 2, 1, 3)
        scores = torch.einsum("bhqd,bhkd->bhqk", q, k_cache) * (Dh ** -0.5)
        p = _softmax(scores, axis=-1)
        o = torch.einsum("bhqk,bhkd->bhqd", p, v_cache)
        return (lambda x, *d: x.permute(*d))(o, 0, 2, 1, 3).reshape(B, Sq, H * Dh) @ wo

    def _B_ref(x, k_cache, v_cache, wq, wo):
        B, Sq, D = x.shape
        Hq, Dh = 32, 128
        Hkv = k_cache.shape[1]
        rep = Hq // Hkv
        q = (lambda x, *d: x.permute(*d))((x @ wq).reshape(B, Sq, Hq, Dh), 0, 2, 1, 3)
        k = (lambda x, n, axis: torch.repeat_interleave(x, n, dim=axis))(k_cache, rep, axis=1)
        v = (lambda x, n, axis: torch.repeat_interleave(x, n, dim=axis))(v_cache, rep, axis=1)
        scores = torch.einsum("bhqd,bhkd->bhqk", q, k) * (Dh ** -0.5)
        p = _softmax(scores, axis=-1)
        o = torch.einsum("bhqk,bhkd->bhqd", p, v)
        return (lambda x, *d: x.permute(*d))(o, 0, 2, 1, 3).reshape(B, Sq, Hq * Dh) @ wo

    a = _A_ref(A_x, A_k_cache, A_v_cache, A_wq, A_wo)
    b = _B_ref(B_x, B_k_cache, B_v_cache, B_wq, B_wo)
    return torch.concatenate([a, b], axis=-1)
```

```python
class Asm:
    def __init__(self):
        self.lines = []
        self.pos = 0
        self.mfma_w = {}
        self.mfma_c = {}
        self.valu_w = {}
        self.trans_w = {}
        self.store_r = {}
        self.lds_q = []
        self.n_inst = 0

    def raw(self, s, slots=1):
        self.lines.append('    ' + s)
        self.pos += slots
        self.n_inst += 1

    def comment(self, s):
        self.lines.append('    ; ' + s)

    def label(self, l):
        self.lines.append(l + ':')

    def nop(self, n):
        while n > 0:
            k = min(n, 16)
            self.raw('s_nop %d' % (k - 1), k)
            n -= k

    def _need(self, table, regs, dist):
        need = 0
        for r in regs:
            if r in table:
                gap = self.pos - table[r] - 1
                need = max(need, dist - gap)
        return need

    def settle(self):
        self.mfma_w.clear(); self.mfma_c.clear(); self.valu_w.clear(); self.trans_w.clear(); self.store_r.clear()

    @staticmethod
    def q(r, n=4):
        return 'v[%d:%d]' % (r, r + n - 1)

    def mfma(self, d, a, b, c=None, op='v_mfma_f32_16x16x32_bf16', na=4):
        A = list(range(a, a + na)); B = list(range(b, b + na)); D = list(range(d, d + 4))
        need = max(self._need(self.valu_w, A + B, 2), self._need(self.mfma_w, A + B, 8))
        if c is not None:
            C = list(range(c, c + 4))
            need = max(need, self._need(self.valu_w, C, 2))
            if c != d:
                need = max(need, self._need(self.mfma_w, C, 6))
        if c != d:
            need = max(need, self._need(self.mfma_w, D, 6))
        self.nop(need)
        cs = '0' if c is None else self.q(c)
        p = self.pos
        self.raw('%s %s, %s, %s, %s' % (op, self.q(d), self.q(a, na), self.q(b, na), cs))
        for r in D: self.mfma_w[r] = p
        if c is not None:
            for r in range(c, c + 4): self.mfma_c[r] = p

    def valu(self, text, dst, src, trans=False, perm=False):
        need = max(self._need(self.mfma_w, list(dst) + list(src), 8),
                   self._need(self.mfma_c, dst, 3),
                   self._need(self.store_r, dst, 2))
        if not trans:
            need = max(need, self._need(self.trans_w, src, 1))
        if perm:
            need = max(need, self._need(self.valu_w, src, 2))
        self.nop(need)
        p = self.pos
        self.raw(text)
        for r in dst:
            self.valu_w[r] = p
            if trans: self.trans_w[r] = p
            else: self.trans_w.pop(r, None)

    def mem(self, text, src=(), dst=(), wide_store=()):
        need = max(self._need(self.mfma_w, list(src) + list(dst) + list(wide_store), 8),
                   self._need(self.trans_w, list(src) + list(wide_store), 1))
        self.nop(need)
        p = self.pos
        self.raw(text)
        for r in wide_store: self.store_r[r] = p

    def lds(self, text, tag, src=(), dst=(), wide_store=()):
        self.mem(text, src, dst, wide_store)
        self.lds_q.append(tag)

    def lds_wait(self, tag):
        idx = [i for i, t in enumerate(self.lds_q) if t == tag]
        if not idx: return
        last = idx[-1]
        n = len(self.lds_q) - 1 - last
        assert n <= 15
        self.raw('s_waitcnt lgkmcnt(%d)' % n)
        self.lds_q = self.lds_q[last + 1:]

    def lds_wait_all(self):
        self.raw('s_waitcnt lgkmcnt(0)')
        self.lds_q = []

    def text(self):
        return '\n'.join(self.lines) + '\n'
```

```python
import sys, math, struct
from asmlib import Asm

NAME = 'concat_heads__mha_block_cached__gqa_block_cached__near_ridge'
K1 = NAME + '_kernel'
K2 = 'oproj_kernel'

def f32bits(x):
    return struct.unpack('<I', struct.pack('<f', x))[0]

SLOT = 16896
Q9X = 0x11000
LDS1 = Q9X + 4096
CSCALE = math.log2(math.e) / math.sqrt(128.0)

def vO(j, t): return j * 32 + t * 4
def vQ(j, T): return 96 + j * 16 + T * 4
def vL(j): return 144 + j * 4
def vNM(j): return 156 + j * 4
vONES = 168
def vS(j, kt): return 172 + j * 8 + kt * 4
def vP(par, j): return (212 if j == 2 else 196 + par * 8 + j * 4)
NPOOL = 6
def vF(i): return 216 + (i % NPOOL) * 4
def vAK(T): return 240 + T
def vAV(T): return 244 + T
vDKV = 248
vT = list(range(249, 256))
def vAcc(j, T, e): return (64 + e * 4) if j == 2 else (j * 32 + T * 8 + e * 4)
def vAW(T): return 72 + T
vDW = 76
vXO = 77
def vX(bank, j, ks): return 96 + bank * 24 + (j * 2 + ks) * 4
NPOOLW = 10
def vFW(i): return 192 + (i % NPOOLW) * 4

sX, sWq, sK, sV, sO = 32, 36, 40, 44, 48
sW = 52
sMK = 53
sMW = 54
sKoff = 55
sVoff = 56
sWoff = 57
sXoff = 58
sXt0, sXt1 = 59, 60
sCnt = 61
sT0, sT1, sT2 = 62, 63, 64
sRet = 66
sSp = 68
sC = 69
sBlk, sH, sB = 70, 71, 72


def srd(a, d, lo, hi, off_sgpr, nrec):
    a.raw('s_add_u32 s%d, s%d, s%d' % (d, lo, off_sgpr))
    a.raw('s_addc_u32 s%d, s%d, 0' % (d + 1, hi))
    a.raw('s_and_b32 s%d, s%d, 0xffff' % (d + 1, d + 1))
    if isinstance(nrec, int):
        a.raw('s_mov_b32 s%d, 0x%x' % (d + 2, nrec))
    else:
        a.raw('s_mov_b32 s%d, %s' % (d + 2, nrec))
    a.raw('s_mov_b32 s%d, 0x20000' % (d + 3))


def issue_pos(a, n):
    slot = (n & 3) * SLOT
    if n < 8:
        offs = [0, 1024, 2080, 3104]
        for i in range(4):
            a.raw('s_add_u32 m0, s%d, %d' % (sMW, slot + offs[i]))
            if i == 0:
                a.raw('s_nop 0')
                a.mem('buffer_load_dwordx4 v%d, s[%d:%d], s%d offen lds' % (vDW, sWq, sWq + 3, sWoff), src=[vDW])
            else:
                a.raw('s_add_u32 s%d, s%d, %d' % (sT0, sWoff, i * 32768))
                a.mem('buffer_load_dwordx4 v%d, s[%d:%d], s%d offen lds' % (vDW, sWq, sWq + 3, sT0), src=[vDW])
        a.raw('s_add_u32 s%d, s%d, %d' % (sWoff, sWoff, 64 * 8192))
        bank = n & 3
        for j in range(3):
            if j < 2:
                a.raw('s_add_u32 s%d, s%d, %d' % (sT0, sXt0 + j, n * 128))
            else:
                a.raw('s_mov_b32 s%d, %d' % (sT0, 8 * 16384 + n * 128))
            for ks in range(2):
                d = vX(bank, j, ks)
                a.mem('buffer_load_dwordx4 %s, v%d, s[%d:%d], s%d offen offset:%d' %
                      (a.q(d), vXO, sX, sX + 3, sT0, ks * 64), src=[vXO], dst=range(d, d + 4))
        return 10
    c = n - 8
    cnt = 0
    if c <= 15:
        for i in range(2):
            a.raw('s_add_u32 m0, s%d, %d' % (sMK, slot + i * 32))
            a.raw('s_nop 0')
            a.mem('buffer_load_dwordx4 v%d, s[%d:%d], s%d offen offset:%d lds' % (vDKV, sK, sK + 3, sKoff, i * 1024), src=[vDKV])
            cnt += 1
        a.raw('s_add_u32 s%d, s%d, 8192' % (sKoff, sKoff))
    if c >= 1:
        for i in range(2):
            a.raw('s_add_u32 m0, s%d, %d' % (sMK, slot + 8448 + i * 32))
            a.raw('s_nop 0')
            a.mem('buffer_load_dwordx4 v%d, s[%d:%d], s%d offen offset:%d lds' % (vDKV, sV, sV + 3, sVoff, i * 1024), src=[vDKV])
            cnt += 1
        a.raw('s_add_u32 s%d, s%d, 8192' % (sVoff, sVoff))
    return cnt


def ops(n):
    if n < 8: return 10
    if n == 8 or n == 24: return 2
    if n <= 23: return 4
    return 0


def colmax(a, j, tmp):
    s = [vS(j, 0) + r for r in range(4)] + [vS(j, 1) + r for r in range(4)]
    t0, t1, t2 = tmp[0], tmp[1], tmp[2]
    a.valu('v_max3_f32 v%d, v%d, v%d, v%d' % (t0, s[0], s[1], s[2]), [t0], s[0:3])
    a.valu('v_max3_f32 v%d, v%d, v%d, v%d' % (t1, s[3], s[4], s[5]), [t1], s[3:6])
    a.valu('v_max3_f32 v%d, v%d, v%d, v%d' % (t0, s[6], s[7], t0), [t0], [s[6], s[7], t0])
    a.valu('v_max_f32 v%d, v%d, v%d' % (t0, t0, t1), [t0], [t0, t1])
    a.valu('v_mov_b32 v%d, v%d' % (t1, t0), [t1], [t0])
    a.valu('v_permlane32_swap_b32 v%d, v%d' % (t0, t1), [t0, t1], [t0, t1], perm=True)
    a.valu('v_max_f32 v%d, v%d, v%d' % (t0, t0, t1), [t0], [t0, t1])
    a.valu('v_mov_b32 v%d, v%d' % (t1, t0), [t1], [t0])
    a.valu('v_permlane16_swap_b32 v%d, v%d' % (t0, t1), [t0, t1], [t0, t1], perm=True)
    a.valu('v_max_f32 v%d, v%d, v%d' % (t0, t0, t1), [t0], [t0, t1])


def recompute_P(a, j, par, delta, tmp):
    t1, t2 = tmp[1], tmp[2]
    for kt in range(2):
        for h in range(2):
            s0 = vS(j, kt) + 2 * h
            a.valu('v_sub_f32 v%d, v%d, v%d' % (t1, s0, delta), [t1], [s0, delta])
            a.valu('v_sub_f32 v%d, v%d, v%d' % (t2, s0 + 1, delta), [t2], [s0 + 1, delta])
            a.valu('v_exp_f32 v%d, v%d' % (t1, t1), [t1], [t1], trans=True)
            a.valu('v_exp_f32 v%d, v%d' % (t2, t2), [t2], [t2], trans=True)
            d = vP(par, j) + kt * 2 + h
            a.valu('v_cvt_pk_bf16_f32 v%d, v%d, v%d' % (d, t1, t2), [d], [t1, t2])


def rare_tile(a, j, par):
    tmp = vT
    colmax(a, j, tmp)
    d = tmp[0]; al = tmp[3]
    a.valu('v_add_f32 v%d, 0x40e00000, v%d' % (d, d), [d], [d])
    a.valu('v_max_f32 v%d, 0, v%d' % (d, d), [d], [d])
    a.valu('v_sub_f32 v%d, 0, v%d' % (al, d), [al], [d])
    a.valu('v_exp_f32 v%d, v%d' % (al, al), [al], [al], trans=True)
    for r in range(4):
        a.valu('v_sub_f32 v%d, v%d, v%d' % (vNM(j) + r, vNM(j) + r, d), [vNM(j) + r], [vNM(j) + r, d])
    for r in range(4):
        a.valu('v_mul_f32 v%d, v%d, v%d' % (vL(j) + r, vL(j) + r, al), [vL(j) + r], [vL(j) + r, al])
    for t in range(8):
        for r in range(4):
            x = vO(j, t) + r
            a.valu('v_mul_f32 v%d, v%d, v%d' % (x, x, al), [x], [x, al])
    recompute_P(a, j, par, d, tmp)


def kread(a, slot, i):
    kt, T = i >> 2, i & 3
    d = vF(i)
    a.lds('ds_read_b128 %s, v%d offset:%d' % (a.q(d), vAK(T), slot + kt * 4224), ('F', i), src=[vAK(T)], dst=range(d, d + 4))


def vread(a, slot, i):
    t = i - 8
    T, e = t >> 1, t & 1
    d = vF(i)
    for u in range(2):
        a.lds('ds_read_b64_tr_b16 %s, v%d offset:%d' % (a.q(d + 2 * u, 2), vAV(T), slot + 8448 + u * 4224 + e * 32),
              ('F', i), src=[vAV(T)], dst=range(d + 2 * u, d + 2 * u + 2))


def stage_body(a, c_par, slot, doS, doPV, s_sp, pv_sp, first_reads, init=False, label_rare=None):
    tS = [0, 1] + ([2] if s_sp else [])
    tPV = [0, 1] + ([2] if pv_sp else [])
    par = c_par
    frags = ([i for i in range(8)] if doS else []) + ([i for i in range(8, 16)] if doPV else [])
    nxt = first_reads

    def request():
        nonlocal nxt
        if nxt < len(frags):
            i = frags[nxt]
            (kread if i < 8 else vread)(a, slot, i)
            nxt += 1

    fill = []
    if doS and not init:
        for kt in range(2):
            for j in tS:
                for h in range(2):
                    s0 = vS(j, kt) + 2 * h
                    ta, tb = vT[(2 * len(fill)) % 4], vT[(2 * len(fill)) % 4 + 1]
                    fill.append((kt, j, h, s0))
    vq = []
    k = 0
    for (kt, j, h, s0) in fill:
        ta, tb = vT[(k % 2) * 2], vT[(k % 2) * 2 + 1]
        d = vP(par, j) + kt * 2 + h
        vq.append((kt, 8, lambda ta=ta, s0=s0: a.valu('v_exp_f32 v%d, v%d' % (ta, s0), [ta], [s0], trans=True)))
        vq.append((kt, 8, lambda tb=tb, s0=s0: a.valu('v_exp_f32 v%d, v%d' % (tb, s0 + 1), [tb], [s0 + 1], trans=True)))
        vq.append((kt, 4, lambda d=d, ta=ta, tb=tb: a.valu('v_cvt_pk_bf16_f32 v%d, v%d, v%d' % (d, ta, tb), [d], [ta, tb])))
        k += 1
    vq2 = []
    pend = None
    for idx in range(0, len(vq), 3):
        e1, e2, cv = vq[idx], vq[idx + 1], vq[idx + 2]
        vq2.append(e1)
        if pend is not None: vq2.append(pend)
        vq2.append(e2)
        pend = cv
    if pend is not None: vq2.append(pend)
    vq = vq2
    if doS and not init:
        pr = []
        for j in tS: pr += [vP(par, j) + r for r in range(4)]
        acc = vT[4]
        first = True
        i = 0
        while i < len(pr):
            if first:
                vq.append((1, 4, lambda x=pr[0], y=pr[1], z=pr[2]: a.valu('v_or3_b32 v%d, v%d, v%d, v%d' % (acc, x, y, z), [acc], [x, y, z])))
                i = 3; first = False
            elif i + 1 < len(pr):
                vq.append((1, 4, lambda x=pr[i], y=pr[i + 1]: a.valu('v_or3_b32 v%d, v%d, v%d, v%d' % (acc, x, y, acc), [acc], [x, y, acc])))
                i += 2
            else:
                vq.append((1, 4, lambda x=pr[i]: a.valu('v_or_b32 v%d, v%d, v%d' % (acc, x, acc), [acc], [x, acc])))
                i += 1
        vq.append((1, 4, lambda: a.valu('v_and_b32 v%d, 0x40004000, v%d' % (acc, acc), [acc], [acc])))
        vq.append((1, 4, lambda: a.valu('v_cmp_ne_u32 vcc, 0, v%d' % acc, [], [acc])))
    ready_kt = -1
    kt_done_pos = {}

    def filler(budget):
        while vq and budget > 0:
            kt, cost, fn = vq[0]
            if kt not in kt_done_pos or a.pos - kt_done_pos[kt] - 1 < 8:
                break
            vq.pop(0)
            fn()
            budget -= cost

    if doS:
        for i in range(8):
            kt, T = i >> 2, i & 3
            a.lds_wait(('F', i))
            for j in tS:
                if T == 0:
                    a.mfma(vS(j, kt), vF(i), vQ(j, T), None if init else vNM(j))
                else:
                    a.mfma(vS(j, kt), vF(i), vQ(j, T), vS(j, kt))
                if j == tS[-1]:
                    if T == 3: kt_done_pos[kt] = a.pos - 1
                    request()
                else:
                    filler(8)
            filler(4)
    if doPV:
        for j in tPV:
            a.mfma(vL(j), vONES, vP(par ^ 1, j), vL(j))
            filler(8)
        for i in range(8, 16):
            t = i - 8
            a.lds_wait(('F', i))
            for j in tPV:
                a.mfma(vO(j, t), vF(i), vP(par ^ 1, j), vO(j, t))
                if j == tPV[-1]:
                    request()
                    filler(4)
                else:
                    filler(8)
    while vq:
        kt, cost, fn = vq.pop(0)
        fn()
    assert not a.lds_q
    if doS and not init:
        a.raw('s_cbranch_vccnz %s' % label_rare)


def gen_k1(a):
    a.label(K1)
    a.raw('s_cmp_ge_u32 s2, 512')
    a.raw('s_cbranch_scc1 L_k1_end')
    a.raw('s_load_dwordx16 s[4:19], s[0:1], 0')
    a.raw('s_load_dwordx8 s[20:27], s[0:1], 64')
    a.raw('s_load_dwordx2 s[28:29], s[0:1], 96')
    a.raw('s_and_b32 s%d, s2, 7' % sT0)
    a.raw('s_lshr_b32 s%d, s2, 3' % sT1)
    a.raw('s_lshr_b32 s%d, s%d, 2' % (sBlk, sT0))
    a.raw('s_and_b32 s%d, s%d, 3' % (sH, sT0))
    a.raw('s_lshl_b32 s%d, s%d, 3' % (sH, sH))
    a.raw('s_and_b32 s%d, s%d, 7' % (sT2, sT1))
    a.raw('s_add_u32 s%d, s%d, s%d' % (sH, sH, sT2))
    a.raw('s_lshr_b32 s%d, s%d, 3' % (sB, sT1))
    tl, tg, tq, tr, tc, tx, ty = 80, 81, 82, 83, 84, 85, 86
    a.valu('v_lshrrev_b32 v%d, 6, v0' % tx, [tx], [0])
    a.valu('v_and_b32 v%d, 63, v0' % tl, [tl], [0])
    a.raw('v_readfirstlane_b32 s%d, v%d' % (sW, tx))
    a.valu('v_lshrrev_b32 v%d, 4, v%d' % (tg, tl), [tg], [tl])
    a.valu('v_and_b32 v%d, 15, v%d' % (tq, tl), [tq], [tl])
    a.valu('v_lshrrev_b32 v%d, 2, v%d' % (tr, tq), [tr], [tq])
    a.valu('v_and_b32 v%d, 3, v%d' % (tc, tl), [tc], [tl])
    a.valu('v_lshlrev_b32 v%d, 10, v%d' % (vXO, tq), [vXO], [tq])
    a.valu('v_lshl_add_u32 v%d, v%d, 4, v%d' % (vXO, tg, vXO), [vXO], [tg, vXO])
    a.valu('v_lshlrev_b32 v%d, 2, v%d' % (tx, tg), [tx], [tg])
    a.valu('v_xor_b32 v%d, v%d, v%d' % (tx, tx, tq), [tx], [tx, tq])
    a.valu('v_lshlrev_b32 v%d, 4, v%d' % (tx, tx), [tx], [tx])
    a.valu('v_lshl_add_u32 v%d, v%d, 8, v%d' % (vDKV, tg, tx), [vDKV], [tg, tx])
    a.valu('v_lshl_add_u32 v%d, v%d, 13, v%d' % (vDW, tg, tx), [vDW], [tg, tx])
    a.raw('s_mul_i32 s%d, s%d, 2112' % (sMK, sW))
    a.raw('s_mul_i32 s%d, s%d, 4160' % (sMW, sW))
    a.raw('s_lshl_b32 s%d, s%d, 11' % (sKoff, sW))
    a.raw('s_mov_b32 s%d, s%d' % (sVoff, sKoff))
    a.raw('s_lshl_b32 s%d, s%d, 17' % (sWoff, sW))
    a.raw('s_lshl_b32 s%d, s%d, 15' % (sXt0, sW))
    a.raw('s_add_u32 s%d, s%d, 16384' % (sXt1, sXt0))
    a.raw('s_mov_b32 s%d, 0x%x' % (sC, f32bits(CSCALE)))
    a.raw('s_waitcnt lgkmcnt(0)')
    a.raw('s_cmp_eq_u32 s%d, 0' % sBlk)
    for k, (A, B) in enumerate([(4, 14), (6, 16), (8, 18), (10, 20)]):
        a.raw('s_cselect_b32 s%d, s%d, s%d' % (A, A, B))
        a.raw('s_cselect_b32 s%d, s%d, s%d' % (A + 1, A + 1, B + 1))
    a.raw('s_lshl_b32 s%d, s%d, 8' % (sT0, sH))
    a.raw('s_sub_u32 s%d, 0x400000, s%d' % (sT1, sT0))
    srd(a, sWq, 10, 11, sT0, 's%d' % sT1)
    a.raw('s_mul_i32 s%d, s%d, 147456' % (sT0, sB))
    srd(a, sX, 4, 5, sT0, 147456)
    a.raw('s_lshl_b32 s%d, s%d, 5' % (sT0, sB))
    a.raw('s_add_u32 s%d, s%d, s%d' % (sT0, sT0, sH))
    a.raw('s_lshl_b32 s%d, s%d, 17' % (sT1, sT0))
    srd(a, sK, 6, 7, sT1, 131072)
    srd(a, sV, 8, 9, sT1, 131072)
    for n in range(4):
        issue_pos(a, n)
    a.raw('s_lshl_b32 s%d, s%d, 5' % (sT0, sB))
    a.raw('s_add_u32 s%d, s%d, s%d' % (sT0, sT0, sH))
    a.raw('s_lshl_b32 s%d, s%d, 8' % (sT1, sBlk))
    a.raw('s_add_u32 s%d, s%d, s%d' % (sT0, sT0, sT1))
    a.raw('s_mul_i32 s%d, s%d, 36864' % (sT0, sT0))
    srd(a, sO, 28, 29, sT0, 36864)
    a.valu('v_lshlrev_b32 v%d, 8, v%d' % (tx, tr), [tx], [tr])
    a.valu('v_lshl_add_u32 v%d, v%d, 3, v%d' % (tx, tc, tx), [tx], [tc, tx])
    a.raw('s_movk_i32 s%d, 2080' % sT0)
    a.raw('s_movk_i32 s%d, 1056' % sT1)
    a.valu('v_mad_u32_u24 v%d, v%d, s%d, v%d' % (ty, tg, sT0, tx), [ty], [tg, tx])
    a.valu('v_mad_u32_u24 v%d, v%d, s%d, v%d' % (tx, tg, sT1, tx), [tx], [tg, tx])
    tz, tw = 87, 88
    a.valu('v_xor_b32 v%d, s%d, v%d' % (tz, sW, tr), [tz], [tr])
    for T in range(4):
        a.valu('v_xor_b32 v%d, %d, v%d' % (tw, T, tz), [tw], [tz])
        a.valu('v_lshl_add_u32 v%d, v%d, 6, v%d' % (vAW(T), tw, ty), [vAW(T)], [tw, ty])
        a.valu('v_xor_b32 v%d, %d, v%d' % (tw, T, tr), [tw], [tr])
        a.valu('v_lshl_add_u32 v%d, v%d, 6, v%d' % (vAV(T), tw, tx), [vAV(T)], [tw, tx])
    a.valu('v_lshlrev_b32 v%d, 8, v%d' % (tx, tc), [tx], [tc])
    a.valu('v_lshl_add_u32 v%d, v%d, 4, v%d' % (tx, tg, tx), [tx], [tg, tx])
    a.valu('v_mad_u32_u24 v%d, v%d, s%d, v%d' % (tx, tr, sT1, tx), [tx], [tr, tx])
    a.valu('v_xor_b32 v%d, s%d, v%d' % (tz, sW, tc), [tz], [tc])
    for T in range(4):
        a.valu('v_xor_b32 v%d, %d, v%d' % (tw, T, tz), [tw], [tz])
        a.valu('v_lshl_add_u32 v%d, v%d, 6, v%d' % (vAK(T), tw, tx), [vAK(T)], [tw, tx])
    vL16 = 89
    a.valu('v_lshlrev_b32 v%d, 4, v%d' % (vL16, tl), [vL16], [tl])

    for n in range(8):
        slot = (n & 3) * SLOT
        bank = n & 3
        pend = sum(ops(m) for m in range(n + 1, n + (4 if n == 0 else 3)))
        a.raw('s_waitcnt vmcnt(%d)' % pend)
        a.raw('s_barrier')
        seq = [(ks, T, e) for ks in range(2) for T in range(4) for e in range(2)]
        def wread(i):
            ks, T, e = seq[i]
            d = vFW(i)
            for hh in range(2):
                a.lds('ds_read_b64_tr_b16 %s, v%d offset:%d' % (a.q(d + 2 * hh, 2), vAW(T), slot + ks * 8320 + hh * 1024 + e * 32),
                      ('W', i), src=[vAW(T)], dst=range(d + 2 * hh, d + 2 * hh + 2))
        PRE = 6
        for i in range(PRE): wread(i)
        if n >= 1:
            issue_pos(a, n + 3)
        for i in range(16):
            ks, T, e = seq[i]
            a.lds_wait(('W', i))
            for j in ([0, 1, 2] if T == 0 else [0, 1]):
                first = (n == 0 and ks == 0)
                a.mfma(vAcc(j, T, e), vFW(i), vX(bank, j, ks), None if first else vAcc(j, T, e))
            if i + PRE < 16: wread(i + PRE)
    def conv(j, T, dq):
        e0, e1 = vAcc(j, T, 0), vAcc(j, T, 1)
        for r in list(range(e0, e0 + 4)) + list(range(e1, e1 + 4)):
            a.valu('v_mul_f32 v%d, s%d, v%d' % (r, sC, r), [r], [r])
        a.valu('v_cvt_pk_bf16_f32 v%d, v%d, v%d' % (dq + 0, e0, e0 + 1), [dq + 0], [e0, e0 + 1])
        a.valu('v_cvt_pk_bf16_f32 v%d, v%d, v%d' % (dq + 2, e1, e1 + 1), [dq + 2], [e1, e1 + 1])
        a.valu('v_cvt_pk_bf16_f32 v%d, v%d, v%d' % (dq + 1, e0 + 2, e0 + 3), [dq + 1], [e0 + 2, e0 + 3])
        a.valu('v_cvt_pk_bf16_f32 v%d, v%d, v%d' % (dq + 3, e1 + 2, e1 + 3), [dq + 3], [e1 + 2, e1 + 3])
    def swap(dq):
        a.valu('v_permlane32_swap_b32 v%d, v%d' % (dq, dq + 2), [dq, dq + 2], [dq, dq + 2], perm=True)
        a.valu('v_permlane32_swap_b32 v%d, v%d' % (dq + 1, dq + 3), [dq + 1, dq + 3], [dq + 1, dq + 3], perm=True)
        a.valu('v_permlane16_swap_b32 v%d, v%d' % (dq, dq + 2), [dq, dq + 2], [dq, dq + 2], perm=True)
        a.valu('v_permlane16_swap_b32 v%d, v%d' % (dq + 1, dq + 3), [dq + 1, dq + 3], [dq + 1, dq + 3], perm=True)
    conv(2, 0, vQ(2, 0))
    swap(vQ(2, 0))
    a.raw('s_lshl_b32 s%d, s%d, 10' % (sT0, sW))
    a.raw('s_add_u32 s%d, s%d, %d' % (sT0, sT0, Q9X))
    a.valu('v_add_u32 v%d, s%d, v%d' % (tx, sT0, vL16), [tx], [vL16])
    a.lds('ds_write_b128 v%d, %s' % (tx, a.q(vQ(2, 0))), 'q9w', src=[tx], wide_store=range(vQ(2, 0), vQ(2, 0) + 4))
    prev = None
    for j in range(2):
        for T in range(4):
            conv(j, T, vQ(j, T))
            if prev is not None: swap(prev)
            prev = vQ(j, T)
    swap(prev)
    a.lds_wait_all()
    a.valu('v_mov_b32 v%d, v%d' % (vT[5], tx), [vT[5]], [tx])
    a.valu('v_mov_b32 v%d, v%d' % (vT[6], vL16), [vT[6]], [vL16])
    for r in range(96):
        a.valu('v_mov_b32 v%d, 0' % r, [r], [])
    for r in range(12):
        a.valu('v_mov_b32 v%d, 0' % (vL(0) + r), [vL(0) + r], [])
    for r in range(4):
        a.valu('v_mov_b32 v%d, 0x3f803f80' % (vONES + r), [vONES + r], [])

    NPRE = 5
    def top(c, issue=True):
        n = 8 + c
        slot = (c & 3) * SLOT
        a.raw('s_waitcnt vmcnt(%d)' % (ops(n + 1) + ops(n + 2)))
        a.raw('s_barrier')
        frs = list(range(8)) if c <= 15 else list(range(8, 16))
        for i in frs[:NPRE]:
            (kread if i < 8 else vread)(a, slot, i)
        if n + 3 <= 24:
            issue_pos(a, n + 3)
    top(0)
    for T in range(1, 4):
        a.valu('v_xor_b32 v%d, %d, v%d' % (vT[0 + T], T << 10, vT[5]), [vT[0 + T]], [vT[5]])
        a.lds('ds_read_b128 %s, v%d' % (a.q(vQ(2, T)), vT[0 + T]), 'q9r', src=[vT[0 + T]], dst=range(vQ(2, T), vQ(2, T) + 4))
    a.lds_wait_all()
    stage_body(a, 0, 0, True, False, True, False, NPRE, init=True)
    for j in range(3):
        colmax(a, j, vT)
        d = vT[0]
        a.valu('v_add_f32 v%d, 0x40e00000, v%d' % (d, d), [d], [d])
        for r in range(4):
            a.valu('v_sub_f32 v%d, 0, v%d' % (vNM(j) + r, d), [vNM(j) + r], [d])
        recompute_P(a, j, 0, d, vT)

    rare_calls = []
    def full_stage(c, tag, nxt_label):
        u = c & 3
        slot = u * SLOT
        doS = c <= 15
        top(c)
        saved = (list(a.lds_q), a.pos)
        if doS:
            a.raw('s_cmp_eq_u32 s%d, %d' % (sW, u))
            a.raw('s_cbranch_scc1 L_%s_A' % tag)
        a.raw('s_cmp_eq_u32 s%d, %d' % (sW, (u + 3) & 3))
        a.raw('s_cbranch_scc1 L_%s_B' % tag)
        variants = [('C', False, False)] + ([('A', True, False)] if doS else []) + [('B', False, True)]
        for (vn, ssp, pvsp) in variants:
            if vn != 'C':
                a.label('L_%s_%s' % (tag, vn))
            a.lds_q = list(saved[0])
            lr = 'L_%s_%s_rare' % (tag, vn)
            stage_body(a, c & 1, slot, doS, True, ssp, pvsp, NPRE, label_rare=lr)
            if doS:
                rare_calls.append((lr, c & 1, ssp, nxt_label))
            if vn != variants[-1][0]:
                a.raw('s_branch %s' % nxt_label)
            a.settle()
    a.raw('s_mov_b32 s%d, 3' % sCnt)
    a.label('L_loop')
    for c in range(1, 5):
        full_stage(c, 'lp%d' % c, 'L_lp%d_next' % c)
        a.label('L_lp%d_next' % c)
    a.raw('s_sub_u32 s%d, s%d, 1' % (sCnt, sCnt))
    a.raw('s_cmp_lg_u32 s%d, 0' % sCnt)
    a.raw('s_cbranch_scc1 L_loop')
    for c in range(13, 17):
        full_stage(c, 'tl%d' % c, 'L_tl%d_next' % c)
        a.label('L_tl%d_next' % c)

    a.nop(8)
    a.settle()
    MRG = SLOT
    WST = 8704
    a.raw('s_mul_i32 s%d, s%d, %d' % (sT0, sW, WST))
    a.valu('v_add_u32 v%d, s%d, v%d' % (vT[0], sT0, vT[6]), [vT[0]], [vT[6]])
    for t in range(8):
        a.lds('ds_write_b128 v%d, %s offset:%d' % (vT[0], a.q(vO(2, t)), MRG + t * 1024), 'mw', src=[vT[0]], wide_store=range(vO(2, t), vO(2, t) + 4))
    a.valu('v_lshrrev_b32 v%d, 2, v%d' % (vT[1], vT[6]), [vT[1]], [vT[6]])
    a.valu('v_add_u32 v%d, s%d, v%d' % (vT[2], sT0, vT[1]), [vT[2]], [vT[1]])
    a.lds('ds_write_b32 v%d, v%d offset:%d' % (vT[2], vL(2), MRG + 8192), 'mw', src=[vT[2], vL(2)])
    a.lds('ds_write_b32 v%d, v%d offset:%d' % (vT[2], vNM(2), MRG + 8192 + 256), 'mw', src=[vT[2], vNM(2)])
    def pack_store(src_e0, src_e1, rc, dq, voff, soff, imm):
        for r in list(range(src_e0, src_e0 + 4)) + list(range(src_e1, src_e1 + 4)):
            a.valu('v_mul_f32 v%d, v%d, v%d' % (r, r, rc), [r], [r, rc])
        a.valu('v_cvt_pk_bf16_f32 v%d, v%d, v%d' % (dq + 0, src_e0, src_e0 + 1), [dq + 0], [src_e0, src_e0 + 1])
        a.valu('v_cvt_pk_bf16_f32 v%d, v%d, v%d' % (dq + 1, src_e0 + 2, src_e0 + 3), [dq + 1], [src_e0 + 2, src_e0 + 3])
        a.valu('v_cvt_pk_bf16_f32 v%d, v%d, v%d' % (dq + 2, src_e1, src_e1 + 1), [dq + 2], [src_e1, src_e1 + 1])
        a.valu('v_cvt_pk_bf16_f32 v%d, v%d, v%d' % (dq + 3, src_e1 + 2, src_e1 + 3), [dq + 3], [src_e1 + 2, src_e1 + 3])
        a.mem('buffer_store_dwordx4 %s, v%d, s[%d:%d], %s offen offset:%d' % (a.q(dq), voff, sO, sO + 3, soff, imm),
              src=[voff], wide_store=range(dq, dq + 4))
    a.valu('v_rcp_f32 v%d, v%d' % (vT[3], vL(0)), [vT[3]], [vL(0)], trans=True)
    a.valu('v_rcp_f32 v%d, v%d' % (vT[4], vL(1)), [vT[4]], [vL(1)], trans=True)
    a.raw('s_lshl_b32 s%d, s%d, 11' % (sT1, sW))
    k = 0
    for T in range(4):
        a.raw('s_add_u32 s%d, s%d, %d' % (sT2, sT1, T * 9216))
        for j in range(2):
            pack_store(vO(j, 2 * T), vO(j, 2 * T + 1), vT[3 + j], vF(k), vT[6], 's%d' % sT2, j * 1024)
            k += 1
    a.lds_wait_all()
    a.raw('s_barrier')
    a.raw('s_lshl_b32 s%d, s%d, 11' % (sT0, sW))
    a.valu('v_add_u32 v%d, s%d, v%d' % (vT[0], sT0, vT[6]), [vT[0]], [vT[6]])
    pm = 0
    for ww in range(4):
        for e in range(2):
            d = pm + (ww * 2 + e) * 4
            a.lds('ds_read_b128 %s, v%d offset:%d' % (a.q(d), vT[0], MRG + ww * WST + e * 1024), 'mr', src=[vT[0]], dst=range(d, d + 4))
        a.lds('ds_read_b32 v%d, v%d offset:%d' % (32 + ww, vT[1], MRG + ww * WST + 8192), 'mr', src=[vT[1]], dst=[32 + ww])
    a.lds_wait_all()
    for ww in range(4):
        a.lds('ds_read_b32 v%d, v%d offset:%d' % (36 + ww, vT[1], MRG + ww * WST + 8192 + 256), 'mr', src=[vT[1]], dst=[36 + ww])
    a.lds_wait_all()
    a.valu('v_min3_f32 v40, v36, v37, v38', [40], [36, 37, 38])
    a.valu('v_min_f32 v40, v40, v39', [40], [40, 39])
    for ww in range(4):
        a.valu('v_sub_f32 v%d, v40, v%d' % (36 + ww, 36 + ww), [36 + ww], [40, 36 + ww])
        a.valu('v_exp_f32 v%d, v%d' % (36 + ww, 36 + ww), [36 + ww], [36 + ww], trans=True)
    a.valu('v_mul_f32 v41, v32, v36', [41], [32, 36])
    for ww in range(1, 4):
        a.valu('v_fma_f32 v41, v%d, v%d, v41' % (32 + ww, 36 + ww), [41], [32 + ww, 36 + ww, 41])
    a.valu('v_rcp_f32 v41, v41', [41], [41], trans=True)
    for r in range(8):
        a.valu('v_mul_f32 v%d, v%d, v36' % (r, r), [r], [r, 36])
        for ww in range(1, 4):
            a.valu('v_fma_f32 v%d, v%d, v%d, v%d' % (r, ww * 8 + r, 36 + ww, r), [r], [ww * 8 + r, 36 + ww, r])
    a.raw('s_mul_i32 s%d, s%d, 9216' % (sT2, sW))
    a.raw('s_add_u32 s%d, s%d, 8192' % (sT2, sT2))
    pack_store(0, 4, 41, 44, vT[6], 's%d' % sT2, 0)
    a.label('L_k1_end')
    a.raw('s_endpgm')

    for (lr, par, ssp, nxt) in rare_calls:
        a.label(lr)
        a.raw('s_mov_b32 s%d, %d' % (sSp, 1 if ssp else 0))
        a.raw('s_call_b64 s[%d:%d], L_rare%d' % (sRet, sRet + 1, par))
        a.raw('s_branch %s' % nxt)
    for par in range(2):
        a.label('L_rare%d' % par)
        a.nop(9)
        a.settle()
        rare_tile(a, 0, par)
        rare_tile(a, 1, par)
        a.raw('s_cmp_eq_u32 s%d, 0' % sSp)
        a.raw('s_cbranch_scc1 L_rare%d_ret' % par)
        rare_tile(a, 2, par)
        a.label('L_rare%d_ret' % par)
        a.nop(2)
        a.raw('s_setpc_b64 s[%d:%d]' % (sRet, sRet + 1))
        a.settle()


D2 = 6
LDS2 = 4 * D2 * 4096
def gen_k2(a):
    sOs, sWo, sOut = 32, 36, 40
    sW2, sM0, sOo, sWoo, sQ0 = 52, 53, 54, 55, 56
    sGrp, sNt, sQh = 70, 71, 72
    def vA(i, n): return (i * 4 + n) * 4
    def vOf(slot, i): return 80 + (slot * 5 + i) * 4
    def vFr(par, n): return 200 + (par * 4 + n) * 4
    def vAB(n): return 232 + n
    vDo, vL16, vL16b = 236, 237, 238
    t = list(range(240, 256))
    a.label(K2)
    a.raw('s_cmp_ge_u32 s2, 256')
    a.raw('s_cbranch_scc1 L_k2_end')
    a.raw('s_load_dwordx2 s[4:5], s[0:1], 32')
    a.raw('s_load_dwordx2 s[6:7], s[0:1], 72')
    a.raw('s_load_dwordx2 s[8:9], s[0:1], 80')
    a.raw('s_load_dwordx2 s[10:11], s[0:1], 96')
    a.raw('s_and_b32 s%d, s2, 7' % sT0)
    a.raw('s_lshr_b32 s%d, s2, 3' % sT1)
    a.raw('s_lshr_b32 s%d, s%d, 4' % (sT2, sT1))
    a.raw('s_lshl_b32 s%d, s%d, 1' % (sGrp, sT0))
    a.raw('s_add_u32 s%d, s%d, s%d' % (sGrp, sGrp, sT2))
    a.raw('s_and_b32 s%d, s%d, 7' % (sNt, sT1))
    a.raw('s_bfe_u32 s%d, s%d, 0x10003' % (sQh, sT1))
    tl, tg, tr, tc, tx, ty, r8 = t[0], t[1], t[2], t[3], t[4], t[5], t[6]
    a.valu('v_lshrrev_b32 v%d, 6, v0' % tx, [tx], [0])
    a.valu('v_and_b32 v%d, 63, v0' % tl, [tl], [0])
    a.raw('v_readfirstlane_b32 s%d, v%d' % (sW2, tx))
    a.valu('v_lshlrev_b32 v%d, 4, v%d' % (vL16, tl), [vL16], [tl])
    a.valu('v_add_u32 v%d, 0x1000, v%d' % (vL16b, vL16), [vL16b], [vL16])
    a.valu('v_lshrrev_b32 v%d, 3, v%d' % (r8, tl), [r8], [tl])
    a.valu('v_and_b32 v%d, 6, v%d' % (tx, r8), [tx], [r8])
    a.valu('v_and_b32 v%d, 7, v%d' % (ty, tl), [ty], [tl])
    a.valu('v_xor_b32 v%d, v%d, v%d' % (tx, tx, ty), [tx], [tx, ty])
    a.valu('v_lshlrev_b32 v%d, 4, v%d' % (tx, tx), [tx], [tx])
    a.valu('v_lshl_add_u32 v%d, v%d, 10, v%d' % (vDo, r8, tx), [vDo], [r8, tx])
    a.valu('v_bfe_u32 v%d, v%d, 2, 3' % (r8, tl), [r8], [tl])
    a.valu('v_lshrrev_b32 v%d, 5, v%d' % (tg, tl), [tg], [tl])
    a.valu('v_and_b32 v%d, 3, v%d' % (tc, tl), [tc], [tl])
    a.valu('v_lshlrev_b32 v%d, 10, v%d' % (tx, tg), [tx], [tg])
    a.valu('v_lshl_add_u32 v%d, v%d, 7, v%d' % (tx, r8, tx), [tx], [r8, tx])
    a.valu('v_lshl_add_u32 v%d, v%d, 3, v%d' % (tx, tc, tx), [tx], [tc, tx])
    a.raw('s_mul_i32 s%d, s%d, %d' % (sM0, sW2, D2 * 4096))
    a.valu('v_lshrrev_b32 v%d, 1, v%d' % (ty, r8), [ty], [r8])
    a.valu('v_add_u32 v%d, s%d, v%d' % (tx, sM0, tx), [tx], [tx])
    for n in range(4):
        a.valu('v_xor_b32 v%d, %d, v%d' % (tr, n, ty), [tr], [ty])
        a.valu('v_lshl_add_u32 v%d, v%d, 5, v%d' % (vAB(n), tr, tx), [vAB(n)], [tr, tx])
    a.raw('s_waitcnt lgkmcnt(0)')
    a.raw('s_cmp_lt_u32 s%d, 8' % sGrp)
    a.raw('s_cselect_b32 s4, s4, s6')
    a.raw('s_cselect_b32 s5, s5, s7')
    a.raw('s_lshl_b32 s%d, s%d, 7' % (sT0, sNt))
    a.raw('s_sub_u32 s%d, 0x400000, s%d' % (sT1, sT0))
    srd(a, sWo, 4, 5, sT0, 's%d' % sT1)
    a.raw('s_mul_i32 s%d, s%d, %d' % (sT0, sGrp, 32 * 36864))
    srd(a, sOs, 10, 11, sT0, 32 * 36864)
    a.raw('s_mul_i32 s%d, s%d, 9216' % (sOo, sW2))
    a.raw('s_lshl_b32 s%d, s%d, 12' % (sT0, sQh))
    a.raw('s_add_u32 s%d, s%d, s%d' % (sOo, sOo, sT0))
    a.raw('s_lshl_b32 s%d, s%d, 15' % (sWoo, sW2))

    def issue(h):
        slot = h % D2
        a.raw('s_add_u32 m0, s%d, %d' % (sM0, slot * 4096))
        for pi in range(4):
            if pi == 0:
                a.raw('s_nop 0')
                so = sWoo
            else:
                a.raw('s_add_u32 s%d, s%d, %d' % (sT0, sWoo, pi * 7168))
                so = sT0
            a.mem('buffer_load_dwordx4 v%d, s[%d:%d], s%d offen offset:%d lds' % (vDo, sWo, sWo + 3, so, pi * 1024), src=[vDo])
        a.raw('s_add_u32 s%d, s%d, %d' % (sWoo, sWoo, 128 * 1024))
        for i in range(5):
            d = vOf(slot, i)
            if i < 4:
                a.mem('buffer_load_dwordx4 %s, v%d, s[%d:%d], s%d offen offset:%d' % (a.q(d), vL16, sOs, sOs + 3, sOo, i * 1024), src=[vL16], dst=range(d, d + 4))
            else:
                a.mem('buffer_load_dwordx4 %s, v%d, s[%d:%d], s%d offen' % (a.q(d), vL16b, sOs, sOs + 3, sOo), src=[vL16b], dst=range(d, d + 4))
        a.raw('s_add_u32 s%d, s%d, %d' % (sOo, sOo, 36864))
    for h in range(D2 - 1):
        issue(h)
    a.raw('s_and_b32 s%d, s%d, 7' % (sT0, sGrp))
    a.raw('s_mul_i32 s%d, s%d, %d' % (sT0, sT0, 144 * 2048))
    a.raw('s_lshr_b32 s%d, s%d, 3' % (sT1, sGrp))
    a.raw('s_lshl_b32 s%d, s%d, 10' % (sT1, sT1))
    a.raw('s_add_u32 s%d, s%d, s%d' % (sT0, sT0, sT1))
    a.raw('s_lshl_b32 s%d, s%d, 7' % (sT1, sNt))
    a.raw('s_add_u32 s%d, s%d, s%d' % (sT0, sT0, sT1))
    a.raw('s_sub_u32 s%d, %d, s%d' % (sT1, 8 * 144 * 2048, sT0))
    srd(a, sOut, 8, 9, sT0, 's%d' % sT1)
    for h in range(32):
        slot = h % D2
        par = h & 1
        infl = min(D2 - 2, 31 - h)
        a.raw('s_waitcnt vmcnt(%d)' % (9 * infl))
        for n in range(4):
            d = vFr(par, n)
            for hh in range(2):
                a.lds('ds_read_b64_tr_b16 %s, v%d offset:%d' % (a.q(d + 2 * hh, 2), vAB(n), slot * 4096 + hh * 2048),
                      ('B', n), src=[vAB(n)], dst=range(d + 2 * hh, d + 2 * hh + 2))
        if h + D2 - 1 < 32:
            issue(h + D2 - 1)
        for n in range(4):
            a.lds_wait(('B', n))
            for i in range(5):
                a.mfma(vA(i, n), vFr(par, n), vOf(slot, i), None if h == 0 else vA(i, n))
    a.raw('s_barrier')
    a.raw('s_mul_i32 s%d, s%d, 20480' % (sT0, sW2))
    a.valu('v_add_u32 v%d, s%d, v%d' % (tx, sT0, vL16), [tx], [vL16])
    for n in range(4):
        for i in range(5):
            a.lds('ds_write_b128 v%d, %s offset:%d' % (tx, a.q(vA(i, n)), (n * 5 + i) * 1024), 'w', src=[tx], wide_store=range(vA(i, n), vA(i, n) + 4))
            if len(a.lds_q) >= 12:
                a.lds_wait_all()
    a.lds_wait_all()
    a.raw('s_barrier')
    a.raw('s_mul_i32 s%d, s%d, 5120' % (sT0, sW2))
    a.valu('v_add_u32 v%d, s%d, v%d' % (tx, sT0, vL16), [tx], [vL16])
    a.valu('v_add_u32 v%d, 0xa000, v%d' % (tr, tx), [tr], [tx])
    for ww in range(4):
        for i in range(5):
            d = 80 + (ww * 5 + i) * 4
            ad = tx if ww < 2 else tr
            a.lds('ds_read_b128 %s, v%d offset:%d' % (a.q(d), ad, (ww & 1) * 20480 + i * 1024), 'r', src=[ad], dst=range(d, d + 4))
        if ww % 2 == 1:
            a.lds_wait_all()
    a.valu('v_and_b32 v%d, 15, v%d' % (ty, tl), [ty], [tl])
    a.valu('v_lshlrev_b32 v%d, 11, v%d' % (ty, ty), [ty], [ty])
    a.valu('v_lshrrev_b32 v%d, 4, v%d' % (tg, tl), [tg], [tl])
    a.valu('v_lshl_add_u32 v%d, v%d, 3, v%d' % (ty, tg, ty), [ty], [tg, ty])
    a.raw('s_lshl_b32 s%d, s%d, 17' % (sT0, sQh))
    a.raw('s_lshl_b32 s%d, s%d, 5' % (sT1, sW2))
    a.raw('s_add_u32 s%d, s%d, s%d' % (sT0, sT0, sT1))
    for i in range(5):
        for r in range(4):
            x = 80 + i * 4 + r
            a.valu('v_add_f32 v%d, v%d, v%d' % (x, x, x + 20), [x], [x, x + 20])
            a.valu('v_add_f32 v%d, v%d, v%d' % (x + 40, x + 40, x + 60), [x + 40], [x + 40, x + 60])
            a.valu('v_add_f32 v%d, v%d, v%d' % (x, x, x + 40), [x], [x, x + 40])
        x = 80 + i * 4
        d = 2 * i
        a.valu('v_cvt_pk_bf16_f32 v%d, v%d, v%d' % (d, x, x + 1), [d], [x, x + 1])
        a.valu('v_cvt_pk_bf16_f32 v%d, v%d, v%d' % (d + 1, x + 2, x + 3), [d + 1], [x + 2, x + 3])
        a.mem('buffer_store_dwordx2 %s, v%d, s[%d:%d], s%d offen' % (a.q(d, 2), ty, sOut, sOut + 3, sT0), src=[ty, d, d + 1])
        a.raw('s_add_u32 s%d, s%d, 32768' % (sT0, sT0))
    a.label('L_k2_end')
    a.raw('s_endpgm')


def kd(name, vg, sg):
    return '''.amdhsa_kernel %s
  .amdhsa_next_free_vgpr %d
  .amdhsa_next_free_sgpr %d
  .amdhsa_accum_offset %d
  .amdhsa_group_segment_fixed_size 0
  .amdhsa_kernarg_size 104
  .amdhsa_user_sgpr_count 2
  .amdhsa_user_sgpr_kernarg_segment_ptr 1
  .amdhsa_system_sgpr_workgroup_id_x 1
.end_amdhsa_kernel
''' % (name, vg, sg, vg)


def main(out):
    hdr = open('cdna_kernels/%s.s.ref' % NAME).read().split('; Override launch')[0]
    s = hdr
    s += '; @launch kernel=%s grid=(512,1,1) block=(256,1,1) lds=%d\n' % (K1, LDS1)
    s += '; @launch kernel=%s grid=(256,1,1) block=(256,1,1) lds=%d\n' % (K2, LDS2)
    s += '.amdgcn_target "amdgcn-amd-amdhsa--gfx950"\n.text\n'
    a = Asm()
    a.lines += ['.globl %s' % K1, '.p2align 8', '.type %s,@function' % K1]
    gen_k1(a)
    n1 = a.n_inst
    a.settle()
    a.lines += ['.globl %s' % K2, '.p2align 8', '.type %s,@function' % K2]
    gen_k2(a)
    s += a.text()
    s += '.section .rodata,"a"\n.p2align 6\n' + kd(K1, 256, 80) + '.p2align 6\n' + kd(K2, 256, 80)
    open(out, 'w').write(s)
    print('instructions: k1 %d, k2 %d' % (n1, a.n_inst - n1))

if __name__ == '__main__':
    main(sys.argv[1] if len(sys.argv) > 1 else 'cdna_kernels/%s.s' % NAME)
```
